```python
import torch

def _softmax(x, axis=-1):
    return torch.softmax(x, dim=axis)
def _gelu(x):
    return torch.nn.functional.gelu(x, approximate="tanh")
def _silu(x):
    return torch.nn.functional.silu(x)
def _sigmoid(x):
    return torch.sigmoid(x)
def _layernorm(x, axis=-1, eps=1e-5):
    m = x.mean(dim=axis, keepdim=True)
    v = x.var(dim=axis, keepdim=True, unbiased=False)
    return (x - m) / torch.sqrt(v + eps)
def _scatter_add(tgt, idx, src, axis=0):
    return tgt.clone().index_add_(axis, idx, src)
def _segment_sum(src, seg, n):
    out = torch.zeros((n,) + src.shape[1:], dtype=src.dtype)
    return out.index_add_(0, seg, src)
def _pad(x, pw):
    flat = tuple(v for pair in reversed(pw) for v in pair)
    return torch.nn.functional.pad(x, flat)

kernel_name = 'concat_heads__grouped_kv_mqa__mha_block__prompt'

def setup_inputs():

    _w = (lambda a: (lambda t: t.to(torch.bfloat16) if t.is_floating_point() else t)(torch.as_tensor(a)))
    def _A_setup():
        B, S, D, H = 1, 2048, 640, 32
        Dh = D // H
        return {
            "x": _w((lambda *s: torch.randn(*s, dtype=torch.bfloat16) * 0.05)(B, S, D)),
            "wq": _w((lambda *s: torch.randn(*s, dtype=torch.bfloat16) * 0.8)(D, H * Dh)),
            "wk": _w((lambda *s: torch.randn(*s, dtype=torch.bfloat16) * 0.8)(D, Dh)),
            "wv": _w((lambda *s: torch.randn(*s, dtype=torch.bfloat16) * 0.1)(D, Dh)),
            "wo": _w((lambda *s: torch.randn(*s, dtype=torch.bfloat16) * 0.1)(H * Dh, D)),
        }
    _A_in = _A_setup()

    def _B_setup():
        B, S, D, H = 1, 2048, 640, 32
        return {
            "x": _w((lambda *s: torch.randn(*s, dtype=torch.bfloat16) * 0.2)(B, S, D)),
            "wqkv": _w((lambda *s: torch.randn(*s, dtype=torch.bfloat16) * 0.2)(D, 3 * D)),
            "wo": _w((lambda *s: torch.randn(*s, dtype=torch.bfloat16) * 0.05)(D, D)),
        }
    _B_in = _B_setup()

    return {
        "A_x": _A_in["x"],
        "A_wq": _A_in["wq"],
        "A_wk": _A_in["wk"],
        "A_wv": _A_in["wv"],
        "A_wo": _A_in["wo"],
        "B_x": _B_in["x"],
        "B_wqkv": _B_in["wqkv"],
        "B_wo": _B_in["wo"],
    }

def reference(A_x, A_wq, A_wk, A_wv, A_wo, B_x, B_wqkv, B_wo):
    def _A_ref(x, wq, wk, wv, wo):
        B, S, D = x.shape
        H = 32
        Dh = D // H
        q = (lambda x, *d: x.permute(*d))((x @ wq).reshape(B, S, H, Dh), 0, 2, 1, 3)
        k = x @ wk
        v = x @ wv
        scores = torch.einsum("bhqd,bkd->bhqk", q, k) * (Dh ** -0.5)
        p = _softmax(scores, axis=-1)
        o = torch.einsum("bhqk,bkd->bhqd", p, v)
        return (lambda x, *d: x.permute(*d))(o, 0, 2, 1, 3).reshape(B, S, H * Dh) @ wo

    def _B_ref(x, wqkv, wo):
        B, S, D = x.shape
        H = 32
        Dh = D // H
        qkv = (lambda x, *d: x.permute(*d))((x @ wqkv).reshape(B, S, 3, H, Dh), 2, 0, 3, 1, 4)
        q, k, v = qkv[0], qkv[1], qkv[2]
        scores = torch.einsum("bhqd,bhkd->bhqk", q, k) * (Dh ** -0.5)
        p = _softmax(scores, axis=-1)
        o = torch.einsum("bhqk,bhkd->bhqd", p, v)
        return (lambda x, *d: x.permute(*d))(o, 0, 2, 1, 3).reshape(B, S, D) @ wo

    a = _A_ref(A_x, A_wq, A_wk, A_wv, A_wo)
    b = _B_ref(B_x, B_wqkv, B_wo)
    return torch.concatenate([a, b], axis=-1)
```

```python
WS_KV = 0
KV_IMG = 163840
KV_TILE = 2560
WS_Q = 0x600000
Q_IMG = 81920
Q_TILE = 1280
WS_O = 0xC00000
QSCALE = 0.32259634

class Asm:
    def __init__(self):
        self.lines = []
    def __call__(self, s=""):
        for ln in s.split("\n"):
            self.lines.append(ln)
    def label(self, l):
        self.lines.append(l + ":")
    def text(self):
        return "\n".join(self.lines) + "\n"

def vr(base, n=1):
    return f"v{base}" if n == 1 else f"v[{base}:{base+n-1}]"
def sr(base, n=1):
    return f"s{base}" if n == 1 else f"s[{base}:{base+n-1}]"

def kernel_header(a, name):
    a(f".globl {name}")
    a(".p2align 8")
    a(f".type {name},@function")
    a(f"{name}:")

def descriptor(name, nvgpr, nsgpr=96):
    acc = min(256, (nvgpr + 3)//4*4)
    return f""".p2align 6
.amdhsa_kernel {name}
  .amdhsa_next_free_vgpr {nvgpr}
  .amdhsa_next_free_sgpr {nsgpr}
  .amdhsa_accum_offset {acc}
  .amdhsa_group_segment_fixed_size 0
  .amdhsa_kernarg_size 88
  .amdhsa_user_sgpr_count 2
  .amdhsa_user_sgpr_kernarg_segment_ptr 1
  .amdhsa_system_sgpr_workgroup_id_x 1
.end_amdhsa_kernel
"""

def srd(a, d, base_lo, base_hi, size):
    if base_lo != f"s{d}": a(f"  s_mov_b32 s{d}, {base_lo}")
    a(f"  s_and_b32 s{d+1}, {base_hi}, 0xffff")
    a(f"  s_mov_b32 s{d+2}, {size}")
    a(f"  s_mov_b32 s{d+3}, 0x20000")

import struct
def f32hex(x):
    return "0x%08x" % struct.unpack("<I", struct.pack("<f", x))[0]
```

```python
from common import *

STG = 43008
XOFF, WOFF, EOFF = 0, 16384, 36864
ACC = 64
def acc(ft, tt): return ACC + (ft*4 + tt)*4
ACCE = 144
FX = [152, 200]; FW = [168, 216]; FXE = [188, 236]; FE = [192, 240]
vX0, vX1, vWA, vWB, vXE0, vXE1, vE = 4, 5, 6, 7, 8, 9, 10
NV = 248
sIsA, sMb, sNb, sType, sNbs, sWv = 20, 21, 22, 23, 24, 25
SRD_X, SRD_W, SRD_E0, SRD_E1, SRD_OUT = 8, 12, 16, 56, 60

def reads(ks, buf, isA):
    r = []
    vx = vX0 if ks == 0 else vX1
    for tt in range(4):
        r.append(f"  ds_read_b128 {vr(FX[buf]+4*tt,4)}, v{vx} offset:{tt*2048}")
    for ft in range(5):
        va = vWA if ft % 2 == 0 else vWB
        for t in range(2):
            r.append(f"  ds_read_b64_tr_b16 {vr(FW[buf]+4*ft+2*t,2)}, v{va} offset:{32*ft + ks*32*320 + t*4*320}")
    if isA:
        vxe = vXE0 if ks == 0 else vXE1
        r.append(f"  ds_read_b128 {vr(FXE[buf],4)}, v{vxe}")
        for dt in range(2):
            for t in range(2):
                r.append(f"  ds_read_b64_tr_b16 {vr(FE[buf]+4*dt+2*t,2)}, v{vE} offset:{32*dt + ks*32*40 + t*4*40}")
    return r

def mfmas(buf, kind):
    m = []
    for ft in range(5):
        for tt in range(4):
            d = vr(acc(ft, tt), 4); w = vr(FW[buf]+4*ft, 4); x = vr(FX[buf]+4*tt, 4)
            if kind == "V": m.append(f"  v_mfma_f32_16x16x32_bf16 {d}, {x}, {w}, {d}")
            else:           m.append(f"  v_mfma_f32_16x16x32_bf16 {d}, {w}, {x}, {d}")
    if kind == "A":
        for dt in range(2):
            d = vr(ACCE+4*dt, 4)
            m.append(f"  v_mfma_f32_16x16x32_bf16 {d}, {vr(FE[buf]+4*dt,4)}, {vr(FXE[buf],4)}, {d}")
    return m

def interleave(a, ms, rs):
    ri = 0
    for i, m in enumerate(ms):
        a(m)
        if ri < len(rs): a(rs[ri]); ri += 1
    while ri < len(rs): a(rs[ri]); ri += 1

def consumer_loop(a, kind):
    isA = kind == "A"
    addr_regs = [vX0, vX1, vWA, vWB] + ([vXE0, vXE1, vE] if isA else [])
    a(f"  s_barrier")
    for r in reads(0, 0, isA): a(r)
    a(f"  s_mov_b32 s26, 0")
    a(f"  s_mov_b32 s27, 0")
    a(f"  s_mov_b32 s66, {STG}")
    a(f"  s_mov_b32 s67, {(-2*STG) & 0xffffffff}")
    a.label(f"L_k1_cons_{kind}")
    a(f"  s_waitcnt lgkmcnt(0)")
    interleave(a, mfmas(0, kind), reads(1, 1, isA))
    a(f"  s_add_u32 s27, s27, 1")
    a(f"  s_cmp_eq_u32 s27, 3")
    a(f"  s_cselect_b32 s28, s67, s66")
    a(f"  s_cselect_b32 s27, 0, s27")
    for r in addr_regs: a(f"  v_add_u32 v{r}, s28, v{r}")
    a(f"  s_waitcnt lgkmcnt(0)")
    a(f"  s_cmp_eq_u32 s26, 9")
    a(f"  s_cbranch_scc1 L_k1_cons_{kind}_last")
    a(f"  s_barrier")
    interleave(a, mfmas(1, kind), reads(0, 0, isA))
    a(f"  s_add_u32 s26, s26, 1")
    a(f"  s_branch L_k1_cons_{kind}")
    a.label(f"L_k1_cons_{kind}_last")
    for m in mfmas(1, kind): a(m)
    a(f"  s_nop 7")

def div20(a, dst, src, tmp_s):
    a(f"  s_movk_i32 s{tmp_s}, 205")
    a(f"  v_mul_lo_u32 v{dst}, v{src}, s{tmp_s}")
    a(f"  v_lshrrev_b32 v{dst}, 12, v{dst}")

def epi_qk(a):
    a(f"  v_lshrrev_b32 v12, 4, v1")
    a(f"  v_lshlrev_b32 v12, 2, v12")
    a(f"  s_and_b32 s28, s{sWv}, 1")
    a(f"  s_mul_i32 s28, s28, 80")
    a(f"  v_add_u32 v12, s28, v12")
    for ft in range(5):
        a(f"  v_add_u32 v13, {16*ft}, v12")
        div20(a, 14, 13, 29)
        a(f"  v_mul_u32_u24 v15, 20, v14")
        a(f"  v_sub_u32 v15, v13, v15")
        a(f"  v_mul_lo_u32 v14, v14, s30")
        a(f"  v_lshrrev_b32 v16, 3, v15")
        a(f"  v_lshlrev_b32 v16, 9, v16")
        a(f"  v_and_b32 v17, 4, v15")
        a(f"  v_lshl_add_u32 v16, v17, 1, v16")
        a(f"  v_cmp_gt_u32 vcc, 16, v15")
        a(f"  v_mov_b32 v18, 3")
        a(f"  v_mov_b32 v19, 4")
        a(f"  v_cndmask_b32 v18, v18, v19, vcc")
        a(f"  v_lshlrev_b32 v17, v18, v11")
        a(f"  v_add3_u32 v20, v14, v16, v17")
        a(f"  v_lshlrev_b32 v17, v18, s33")
        a(f"  v_add_u32 v21, v20, v17")
        for tt in range(4):
            A = acc(ft, tt)
            for r in range(4): a(f"  v_mul_f32 v{A+r}, s34, v{A+r}")
            a(f"  v_cvt_pk_bf16_f32 v{A}, v{A}, v{A+1}")
            a(f"  v_cvt_pk_bf16_f32 v{A+1}, v{A+2}, v{A+3}")
            a(f"  buffer_store_dwordx2 {vr(A,2)}, v{20 + (tt&1)}, s[{SRD_OUT}:{SRD_OUT+3}], s{31 + (tt>>1)} offen")

def vpos(a, dst, d, t1):
    a(f"  v_mov_b32 v{t1}, 0")
    for thr, delta in ((4, 10), (8, 2), (12, -8), (16, 2), (18, -10)):
        a(f"  v_cmp_le_u32 vcc, {thr}, v{d}")
        a(f"  s_nop 1")
        a(f"  v_cndmask_b32 v{t1}, v{t1}, {delta}, vcc")
    a(f"  v_add_u32 v{dst}, v{d}, v{t1}")

def epi_v(a):
    a(f"  v_and_b32 v12, 15, v1")
    a(f"  s_and_b32 s28, s{sWv}, 1")
    a(f"  s_mul_i32 s28, s28, 80")
    a(f"  v_add_u32 v12, s28, v12")
    a(f"  v_lshrrev_b32 v11, 4, v1")
    a(f"  v_mul_u32_u24 v11, 320, v11")
    a(f"  v_add_u32 v11, 1280, v11")
    a(f"  s_mov_b32 s30, {KV_IMG}")
    for ft in range(5):
        a(f"  v_add_u32 v13, {16*ft}, v12")
        div20(a, 14, 13, 29)
        a(f"  v_mul_u32_u24 v15, 20, v14")
        a(f"  v_sub_u32 v15, v13, v15")
        a(f"  v_mul_lo_u32 v14, v14, s30")
        vpos(a, 16, 15, 17)
        a(f"  v_lshlrev_b32 v16, 4, v16")
        a(f"  v_add3_u32 v20, v14, v16, v11")
        for u in range(2):
            A = acc(ft, 2*u); B = acc(ft, 2*u+1)
            a(f"  v_cvt_pk_bf16_f32 v24, v{A}, v{A+1}")
            a(f"  v_cvt_pk_bf16_f32 v25, v{A+2}, v{A+3}")
            a(f"  v_cvt_pk_bf16_f32 v26, v{B}, v{B+1}")
            a(f"  v_cvt_pk_bf16_f32 v27, v{B+2}, v{B+3}")
            a(f"  buffer_store_dwordx4 v[24:27], v20, s[{SRD_OUT}:{SRD_OUT+3}], s{31+u} offen")
            a(f"  s_nop 1")

def epi_extra(a):
    a(f"  s_add_u32 s{SRD_E0}, s52, {WS_KV + 32*KV_IMG}")
    a(f"  s_addc_u32 s{SRD_E0+1}, s53, 0")
    a(f"  s_and_b32 s{SRD_E0+1}, s{SRD_E0+1}, 0xffff")
    a(f"  s_mov_b32 s{SRD_E0+2}, {KV_IMG}")
    a(f"  s_mov_b32 s{SRD_E0+3}, 0x20000")
    a(f"  s_lshl_b32 s28, s{sMb}, 2")
    a(f"  s_add_u32 s28, s28, s{sNb}")
    a(f"  s_mul_i32 s28, s28, {KV_TILE}")
    a(f"  v_and_b32 v11, 15, v1")
    a(f"  v_lshrrev_b32 v12, 4, v1")
    a(f"  s_and_b32 s29, s{sWv}, 1")
    a(f"  s_cmp_ge_u32 s{sWv}, 2")
    a(f"  s_cbranch_scc1 L_k1_extra_v")
    a(f"  v_lshrrev_b32 v13, 2, v11")
    a(f"  v_lshlrev_b32 v13, 3, v13")
    a(f"  v_and_b32 v14, 3, v11")
    a(f"  s_lshl_b32 s29, s29, 2")
    a(f"  v_add3_u32 v13, v13, v14, s29")
    a(f"  v_lshrrev_b32 v14, 1, v12")
    a(f"  v_lshlrev_b32 v14, 9, v14")
    a(f"  v_and_b32 v15, 1, v12")
    a(f"  v_lshl_add_u32 v14, v15, 3, v14")
    a(f"  v_lshl_add_u32 v14, v13, 4, v14")
    a(f"  v_lshlrev_b32 v15, 3, v13")
    a(f"  v_add_u32 v15, 1024, v15")
    E = ACCE
    a(f"  v_cvt_pk_bf16_f32 v{E}, v{E}, v{E+1}")
    a(f"  v_cvt_pk_bf16_f32 v{E+1}, v{E+2}, v{E+3}")
    a(f"  v_cvt_pk_bf16_f32 v{E+4}, v{E+4}, v{E+5}")
    a(f"  v_cvt_pk_bf16_f32 v{E+5}, v{E+6}, v{E+7}")
    a(f"  buffer_store_dwordx2 {vr(E,2)}, v14, s[{SRD_E0}:{SRD_E0+3}], s28 offen")
    a(f"  s_mov_b64 exec, 0xffff")
    a(f"  buffer_store_dwordx2 {vr(E+4,2)}, v15, s[{SRD_E0}:{SRD_E0+3}], s28 offen")
    a(f"  s_mov_b64 exec, -1")
    a(f"  s_branch L_k1_done")
    a.label("L_k1_extra_v")
    a(f"  v_lshrrev_b32 v13, 2, v11")
    a(f"  v_mul_u32_u24 v13, 320, v13")
    a(f"  v_and_b32 v14, 3, v11")
    a(f"  s_lshl_b32 s29, s29, 2")
    a(f"  v_add_u32 v14, s29, v14")
    a(f"  v_lshl_add_u32 v13, v14, 1, v13")
    a(f"  v_add_u32 v13, 1280, v13")
    a(f"  v_lshlrev_b32 v14, 2, v12")
    vpos(a, 15, 14, 16)
    a(f"  v_lshl_add_u32 v15, v15, 4, v13")
    E = ACCE
    a(f"  v_cvt_pk_bf16_f32 v{E}, v{E}, v{E+1}")
    a(f"  v_cvt_pk_bf16_f32 v{E+1}, v{E+2}, v{E+3}")
    a(f"  v_cvt_pk_bf16_f32 v{E+4}, v{E+4}, v{E+5}")
    a(f"  v_cvt_pk_bf16_f32 v{E+5}, v{E+6}, v{E+7}")
    S = f"s[{SRD_E0}:{SRD_E0+3}]"
    a(f"  buffer_store_short v{E}, v15, {S}, s28 offen")
    a(f"  buffer_store_short_d16_hi v{E}, v15, {S}, s28 offen offset:16")
    a(f"  buffer_store_short v{E+1}, v15, {S}, s28 offen offset:32")
    a(f"  buffer_store_short_d16_hi v{E+1}, v15, {S}, s28 offen offset:48")
    a(f"  s_mov_b64 exec, 0xffff")
    a(f"  buffer_store_short v{E+4}, v13, {S}, s28 offen offset:{18*16}")
    a(f"  buffer_store_short_d16_hi v{E+4}, v13, {S}, s28 offen offset:{19*16}")
    a(f"  buffer_store_short v{E+5}, v13, {S}, s28 offen offset:{8*16}")
    a(f"  buffer_store_short_d16_hi v{E+5}, v13, {S}, s28 offen offset:{9*16}")
    a(f"  s_mov_b64 exec, -1")

def loader(a, isA):
    nm = "A" if isA else "B"
    n = 11 if isA else 9
    RS = 1280 if isA else 3840
    a(f"  s_sub_u32 s26, s{sWv}, 4")
    a(f"  v_lshrrev_b32 v10, 3, v1")
    a(f"  s_lshl_b32 s27, s26, 3")
    a(f"  v_add_u32 v10, s27, v10")
    a(f"  v_lshrrev_b32 v11, 1, v10")
    a(f"  v_and_b32 v11, 7, v11")
    a(f"  v_and_b32 v12, 7, v1")
    a(f"  v_xor_b32 v12, v12, v11")
    a(f"  v_lshlrev_b32 v12, 4, v12")
    a(f"  v_mul_u32_u24 v10, 1280, v10")
    a(f"  v_add_u32 v2, v10, v12")
    a(f"  s_movk_i32 s28, 3277")
    a(f"  s_movk_i32 s29, {RS}")
    for i in range(5):
        a(f"  s_add_u32 s27, s26, {4*i}")
        a(f"  s_lshl_b32 s27, s27, 6")
        a(f"  v_add_u32 v10, s27, v1")
        a(f"  v_mul_lo_u32 v11, v10, s28")
        a(f"  v_lshrrev_b32 v11, 16, v11")
        a(f"  v_mul_u32_u24 v12, 20, v11")
        a(f"  v_sub_u32 v12, v10, v12")
        a(f"  v_lshrrev_b32 v13, 3, v11")
        a(f"  v_and_b32 v13, 1, v13")
        a(f"  v_lshlrev_b32 v13, 1, v13")
        a(f"  v_xor_b32 v12, v12, v13")
        a(f"  v_lshlrev_b32 v12, 4, v12")
        a(f"  v_mul_lo_u32 v11, v11, s29")
        a(f"  v_add_u32 v{3+i}, v11, v12")
    if isA:
        for t, srd_ in ((0, SRD_E0), (1, SRD_E1)):
            a(f"  s_lshl_b32 s27, s26, 1")
            a(f"  s_add_u32 s27, s27, {t}")
            a(f"  s_cmp_lt_u32 s27, 3")
            a(f"  s_cselect_b32 s{srd_}, s40, s42")
            a(f"  s_cselect_b32 s{srd_+1}, s41, s43")
            a(f"  s_cselect_b32 s30, 0, 3")
            a(f"  s_cselect_b32 s{64+t}, 0, 3072")
            a(f"  s_and_b32 s{srd_+1}, s{srd_+1}, 0xffff")
            a(f"  s_mov_b32 s{srd_+2}, 25600")
            a(f"  s_mov_b32 s{srd_+3}, 0x20000")
            a(f"  s_sub_u32 s27, s27, s30")
            a(f"  s_min_u32 s27, s27, 2")
            a(f"  s_lshl_b32 s27, s27, 10")
            a(f"  s_add_u32 s{64+t}, s{64+t}, s27")
            a(f"  v_lshlrev_b32 v10, 4, v1")
            a(f"  v_add_u32 v{8+t}, s27, v10")
    a(f"  s_mov_b32 s27, 0")
    a(f"  s_mov_b32 s28, 0")
    a(f"  s_mov_b32 s29, 0")
    a(f"  s_mov_b32 s30, 0")
    a(f"  s_mov_b32 s31, 0")
    a(f"  s_lshl_b32 s32, s26, 10")
    a.label(f"L_k1_ld_{nm}")
    a(f"  s_cmp_lt_u32 s27, 3")
    a(f"  s_cbranch_scc1 L_k1_ld_{nm}_nowait")
    a(f"  s_cmp_eq_u32 s27, 11")
    a(f"  s_cbranch_scc1 L_k1_ld_{nm}_w0")
    a(f"  s_waitcnt vmcnt({n})")
    a(f"  s_branch L_k1_ld_{nm}_bar")
    a.label(f"L_k1_ld_{nm}_w0")
    a(f"  s_waitcnt vmcnt(0)")
    a.label(f"L_k1_ld_{nm}_bar")
    a(f"  s_barrier")
    a.label(f"L_k1_ld_{nm}_nowait")
    a(f"  s_cmp_gt_u32 s27, 9")
    a(f"  s_cbranch_scc1 L_k1_ld_{nm}_noissue")
    a(f"  s_add_u32 s33, s28, s32")
    for i in range(4):
        a(f"  s_add_u32 m0, s33, {XOFF + 4096*i}")
        a(f"  s_add_u32 s34, s29, {i*40960}")
        a(f"  buffer_load_dwordx4 v2, s[{SRD_X}:{SRD_X+3}], s34 offen lds")
    for i in range(5):
        a(f"  s_add_u32 m0, s33, {WOFF + 4096*i}")
        a(f"  s_nop 0")
        a(f"  buffer_load_dwordx4 v{3+i}, s[{SRD_W}:{SRD_W+3}], s30 offen lds")
    if isA:
        for t, srd_ in ((0, SRD_E0), (1, SRD_E1)):
            a(f"  s_add_u32 s34, s28, s{64+t}")
            a(f"  s_add_u32 m0, s34, {EOFF}")
            a(f"  s_nop 0")
            a(f"  buffer_load_dwordx4 v{8+t}, s[{srd_}:{srd_+3}], s31 offen lds")
    a(f"  s_add_u32 s29, s29, 128")
    a(f"  s_add_u32 s30, s30, {64*RS}")
    a(f"  s_add_u32 s31, s31, 2560")
    a(f"  s_add_u32 s28, s28, {STG}")
    a(f"  s_cmp_eq_u32 s28, {3*STG}")
    a(f"  s_cselect_b32 s28, 0, s28")
    a.label(f"L_k1_ld_{nm}_noissue")
    a(f"  s_cmp_lg_u32 s27, 2")
    a(f"  s_cbranch_scc1 L_k1_ld_{nm}_next")
    a(f"  s_waitcnt vmcnt({2*n})")
    a(f"  s_barrier")
    a.label(f"L_k1_ld_{nm}_next")
    a(f"  s_add_u32 s27, s27, 1")
    a(f"  s_cmp_lt_u32 s27, 12")
    a(f"  s_cbranch_scc1 L_k1_ld_{nm}")
    a(f"  s_endpgm")

def gen_k1(a, name):
    kernel_header(a, name)
    a(f"""  s_cmp_ge_u32 s2, 256
  s_cbranch_scc1 L_k1_done
  s_load_dwordx16 s[36:51], s[0:1], 0
  s_load_dwordx2 s[52:53], s[0:1], 80
  v_lshrrev_b32 v2, 6, v0
  v_and_b32 v1, 63, v0
  v_readfirstlane_b32 s{sWv}, v2
  s_and_b32 s26, s2, 7            ; xcd
  s_lshr_b32 s27, s2, 3           ; j
  s_lshr_b32 s28, s26, 1
  s_lshl_b32 s28, s28, 2          ; 4*(x>>1)
  s_and_b32 s29, s26, 1           ; x&1
  s_cmp_ge_u32 s27, 24
  s_cselect_b32 s{sIsA}, 1, 0
  s_cselect_b32 s30, 24, 0
  s_cselect_b32 s31, 2, 6
  s_sub_u32 s27, s27, s30         ; j'
  s_and_b32 s30, s27, 3
  s_add_u32 s{sMb}, s28, s30      ; mb
  s_lshr_b32 s27, s27, 2
  s_mul_i32 s29, s29, s31
  s_add_u32 s{sNb}, s29, s27      ; nb
  s_lshr_b32 s{sType}, s{sNb}, 2
  s_and_b32 s{sNbs}, s{sNb}, 3
  s_cmp_eq_u32 s{sIsA}, 1
  s_cselect_b32 s{sType}, 0, s{sType}
  s_waitcnt lgkmcnt(0)
  s_cmp_ge_u32 s{sWv}, 4
  s_cbranch_scc0 L_k1_consumer
  s_cmp_eq_u32 s{sIsA}, 1
  s_cselect_b32 s26, s36, s46
  s_cselect_b32 s27, s37, s47
  s_mul_i32 s28, s{sMb}, 163840
  s_add_u32 s{SRD_X}, s26, s28
  s_addc_u32 s{SRD_X+1}, s27, 0
  s_and_b32 s{SRD_X+1}, s{SRD_X+1}, 0xffff
  s_mov_b32 s{SRD_X+2}, 163840
  s_mov_b32 s{SRD_X+3}, 0x20000
  s_cmp_eq_u32 s{sIsA}, 1
  s_cselect_b32 s26, s38, s48
  s_cselect_b32 s27, s39, s49
  s_mov_b32 s29, {640*3840}
  s_cselect_b32 s29, {640*1280}, s29
  s_mul_i32 s28, s{sNb}, 320
  s_add_u32 s{SRD_W}, s26, s28
  s_addc_u32 s{SRD_W+1}, s27, 0
  s_and_b32 s{SRD_W+1}, s{SRD_W+1}, 0xffff
  s_sub_u32 s{SRD_W+2}, s29, s28
  s_mov_b32 s{SRD_W+3}, 0x20000
  s_cmp_eq_u32 s{sIsA}, 1
  s_cbranch_scc1 L_k1_loader_A""")
    loader(a, False)
    a.label("L_k1_loader_A")
    loader(a, True)
    a.label("L_k1_consumer")
    a(f"""  v_and_b32 v11, 15, v1           ; i
  v_lshrrev_b32 v12, 4, v1        ; kg
  s_lshr_b32 s26, s{sWv}, 1       ; wm
  s_and_b32 s27, s{sWv}, 1        ; wn
  s_lshl_b32 s28, s26, 6
  v_add_u32 v13, s28, v11
  v_lshlrev_b32 v13, 7, v13
  v_lshrrev_b32 v14, 1, v11
  v_xor_b32 v14, v14, v12
  v_lshlrev_b32 v14, 4, v14
  v_add_u32 v{vX0}, v13, v14
  v_xor_b32 v{vX1}, 64, v{vX0}
  s_lshl_b32 s28, s{sNb}, 5
  s_lshl_b32 s29, s27, 4
  s_add_u32 s28, s28, s29
  v_add_u32 v13, s28, v11
  v_lshlrev_b32 v13, 7, v13
  v_add_u32 v{vXE0}, v13, v14
  v_xor_b32 v{vXE1}, 64, v{vXE0}
  v_lshrrev_b32 v13, 2, v11       ; r
  v_lshl_add_u32 v13, v12, 3, v13 ; 8kg + r
  v_mul_u32_u24 v15, 320, v13
  v_and_b32 v14, 3, v11           ; c
  v_lshl_add_u32 v15, v14, 3, v15
  s_mul_i32 s28, s27, 160
  s_add_u32 s28, s28, {WOFF}
  v_add_u32 v15, s28, v15
  v_and_b32 v16, 1, v12
  v_lshlrev_b32 v16, 5, v16
  v_add_u32 v17, v15, v16
  v_sub_u32 v18, v15, v16
  s_cmp_eq_u32 s27, 0
  s_cselect_b64 vcc, -1, 0
  v_cndmask_b32 v{vWA}, v18, v17, vcc
  v_cndmask_b32 v{vWB}, v17, v18, vcc
  v_mul_u32_u24 v15, 40, v13
  v_lshl_add_u32 v15, v14, 3, v15
  s_cmp_ge_u32 s{sWv}, 2
  s_mov_b32 s28, {EOFF}
  s_cselect_b32 s28, {EOFF+3072}, s28
  v_add_u32 v{vE}, s28, v15""")
    for r in range(ACC, ACC+88): a(f"  v_mov_b32 v{r}, 0")
    a(f"""  s_cmp_eq_u32 s{sIsA}, 1
  s_cbranch_scc1 L_k1_c_A
  s_cmp_eq_u32 s{sType}, 2
  s_cbranch_scc1 L_k1_c_V""")
    consumer_loop(a, "Q")
    a("  s_branch L_k1_epi_qk")
    a.label("L_k1_c_A")
    consumer_loop(a, "A")
    a.label("L_k1_epi_qk")
    a(f"""  s_lshr_b32 s26, s{sWv}, 1       ; wm
  s_lshl_b32 s27, s{sMb}, 2
  s_lshl_b32 s28, s26, 1
  s_add_u32 s27, s27, s28
  v_and_b32 v11, 15, v1
  s_cmp_eq_u32 s{sType}, 1
  s_cbranch_scc1 L_k1_par_k
  s_xor_b32 s28, s{sIsA}, 1       ; prob (A=0,B=1)
  s_lshl_b32 s28, s28, 5
  s_lshl_b32 s29, s{sNbs}, 3
  s_add_u32 s28, s28, s29
  s_mul_i32 s28, s28, {Q_IMG}
  s_add_u32 s28, s28, {WS_Q}
  s_mov_b32 s{SRD_OUT+2}, {8*Q_IMG}
  s_mov_b32 s30, {Q_IMG}
  s_mul_i32 s31, s27, {Q_TILE}
  s_add_u32 s32, s31, {Q_TILE}
  s_mov_b32 s33, 16
  s_mov_b32 s34, {f32hex(QSCALE)}
  s_branch L_k1_par_done""")
    a.label("L_k1_par_k")
    a(f"""  s_lshl_b32 s29, s{sNbs}, 3
  s_mul_i32 s28, s29, {KV_IMG}
  s_add_u32 s28, s28, {WS_KV}
  s_mov_b32 s{SRD_OUT+2}, {8*KV_IMG}
  s_mov_b32 s30, {KV_IMG}
  s_mul_i32 s31, s27, {KV_TILE}
  s_add_u32 s32, s31, {KV_TILE}
  s_mov_b32 s33, 4
  s_mov_b32 s34, 1.0
  v_lshrrev_b32 v12, 2, v11
  v_lshlrev_b32 v12, 3, v12
  v_and_b32 v11, 3, v11
  v_add_u32 v11, v11, v12""")
    a.label("L_k1_par_done")
    a(f"""  s_add_u32 s{SRD_OUT}, s52, s28
  s_addc_u32 s{SRD_OUT+1}, s53, 0
  s_and_b32 s{SRD_OUT+1}, s{SRD_OUT+1}, 0xffff
  s_mov_b32 s{SRD_OUT+3}, 0x20000""")
    epi_qk(a)
    a(f"  s_cmp_eq_u32 s{sIsA}, 1")
    a(f"  s_cbranch_scc0 L_k1_done")
    epi_extra(a)
    a("  s_branch L_k1_done")
    a.label("L_k1_c_V")
    consumer_loop(a, "V")
    a(f"""  s_lshr_b32 s26, s{sWv}, 1
  s_lshl_b32 s27, s{sMb}, 2
  s_lshl_b32 s28, s26, 1
  s_add_u32 s27, s27, s28
  s_lshl_b32 s29, s{sNbs}, 3
  s_mul_i32 s28, s29, {KV_IMG}
  s_add_u32 s28, s28, {WS_KV}
  s_add_u32 s{SRD_OUT}, s52, s28
  s_addc_u32 s{SRD_OUT+1}, s53, 0
  s_and_b32 s{SRD_OUT+1}, s{SRD_OUT+1}, 0xffff
  s_mov_b32 s{SRD_OUT+2}, {8*KV_IMG}
  s_mov_b32 s{SRD_OUT+3}, 0x20000
  s_mul_i32 s31, s27, {KV_TILE}
  s_add_u32 s32, s31, {KV_TILE}""")
    epi_v(a)
    a.label("L_k1_done")
    a("  s_endpgm")
    return NV
```

```python
from common import *

QA0, QB0, QA1, QB1 = 16, 20, 24, 26
K0 = [28, 32]; K1 = [36, 38]
V0 = [40, 48]; V1 = [44, 52]
OA, OB = 56, 72
SA = [88, 120]; SB = [104, 136]
NV = 152
vK0a, vK1a, vVa, vIdx = 5, 6, 7, 8
SRD_KV, SRD_Q, SRD_O = 8, 12, 16
sW, sIt, sJ, sM0, sT = 20, 21, 22, 23, 24
sVM = 40

def qk16(a, S, K, Q):   a(f"  v_mfma_f32_32x32x16_bf16 {vr(S,16)}, {vr(K,4)}, {vr(Q,4)}, 0")
def qk8(a, S, K, Q):    a(f"  v_mfma_f32_32x32x8bf16_1k {vr(S,16)}, {vr(K,2)}, {vr(Q,2)}, {vr(S,16)}")
def pv(a, O, V, P):     a(f"  v_smfmac_f32_32x32x32_bf16 {vr(O,16)}, {vr(V,4)}, {vr(P,8)}, v{vIdx}")

def step(a, u):
    cur = u & 1; nxt = cur ^ 1
    E = [SA[cur]+i for i in range(16)] + [SB[cur]+i for i in range(16)]
    def ex(lo, hi):
        for i in range(lo, hi): a(f"  v_exp_f32 v{E[i]}, v{E[i]}")
    a(f"  s_waitcnt lgkmcnt(0)")
    a(f"  ds_read_b128 {vr(K0[cur],4)}, v{vK0a} offset:{(u+2)*KV_TILE}")
    a(f"  ds_read_b64 {vr(K1[cur],2)}, v{vK1a} offset:{(u+2)*KV_TILE}")
    ex(0, 2)
    pv(a, OB, V1[nxt], SB[nxt]+8)
    a(f"  s_mov_b64 exec, s[{sVM}:{sVM+1}]")
    a(f"  ds_read_b128 {vr(V0[nxt],4)}, v{vVa} offset:{(u+1)*KV_TILE}")
    a(f"  ds_read_b128 {vr(V1[nxt],4)}, v{vVa} offset:{(u+1)*KV_TILE+640}")
    a(f"  s_mov_b64 exec, -1")
    ex(2, 6)
    qk16(a, SA[nxt], K0[nxt], QA0)
    ex(6, 10)
    pv(a, OA, V0[cur], SA[cur])
    ex(10, 14)
    qk8(a, SA[nxt], K1[nxt], QA1)
    ex(14, 18)
    pv(a, OA, V1[cur], SA[cur]+8)
    ex(18, 22)
    qk16(a, SB[nxt], K0[nxt], QB0)
    ex(22, 26)
    pv(a, OB, V0[cur], SB[cur])
    ex(26, 30)
    qk8(a, SB[nxt], K1[nxt], QB1)
    ex(30, 32)

def slow_tile(a, name, Q0, Q1, O):
    S = SA[0]; m = 9; t = 10; ak0 = 11; ak1 = 12; av = 13
    a(f"  v_mov_b32 v{m}, 0xff800000")
    a(f"  v_lshlrev_b32 v{ak0}, 4, v1")
    a(f"  v_subrev_u32 v{ak1}, {64*KV_TILE}, v{vK1a}")
    a(f"  s_mov_b32 s{sT}, 64")
    a.label(f"L_slow1_{name}")
    a(f"  ds_read_b128 {vr(K0[0],4)}, v{ak0}")
    a(f"  ds_read_b64 {vr(K1[0],2)}, v{ak1}")
    a(f"  s_waitcnt lgkmcnt(0)")
    qk16(a, S, K0[0], Q0)
    qk8(a, S, K1[0], Q1)
    a(f"  s_nop 15")
    for i in range(0, 16, 2):
        a(f"  v_max3_f32 v{m}, v{S+i}, v{S+i+1}, v{m}")
    a(f"  v_add_u32 v{ak0}, {KV_TILE}, v{ak0}")
    a(f"  v_add_u32 v{ak1}, {KV_TILE}, v{ak1}")
    a(f"  s_sub_u32 s{sT}, s{sT}, 1")
    a(f"  s_cmp_lg_u32 s{sT}, 0")
    a(f"  s_cbranch_scc1 L_slow1_{name}")
    a(f"  v_mov_b32 v{t}, v{m}")
    a(f"  s_nop 1")
    a(f"  v_permlane32_swap_b32 v{m}, v{t}")
    a(f"  s_nop 1")
    a(f"  v_max_f32 v{m}, v{m}, v{t}")
    for i in range(16): a(f"  v_mov_b32 v{O+i}, 0")
    a(f"  v_lshlrev_b32 v{ak0}, 4, v1")
    a(f"  v_subrev_u32 v{ak1}, {64*KV_TILE}, v{vK1a}")
    a(f"  v_subrev_u32 v{av}, {64*KV_TILE}, v{vVa}")
    a(f"  s_mov_b32 s{sT}, 64")
    a.label(f"L_slow2_{name}")
    a(f"  ds_read_b128 {vr(K0[0],4)}, v{ak0}")
    a(f"  ds_read_b64 {vr(K1[0],2)}, v{ak1}")
    a(f"  s_mov_b64 exec, s[{sVM}:{sVM+1}]")
    a(f"  ds_read_b128 {vr(V0[0],4)}, v{av}")
    a(f"  ds_read_b128 {vr(V1[0],4)}, v{av} offset:640")
    a(f"  s_mov_b64 exec, -1")
    a(f"  s_waitcnt lgkmcnt(0)")
    qk16(a, S, K0[0], Q0)
    qk8(a, S, K1[0], Q1)
    a(f"  s_nop 15")
    for i in range(16): a(f"  v_sub_f32 v{S+i}, v{S+i}, v{m}")
    for i in range(16): a(f"  v_exp_f32 v{S+i}, v{S+i}")
    a(f"  s_nop 1")
    pv(a, O, V0[0], S)
    pv(a, O, V1[0], S+8)
    a(f"  v_add_u32 v{ak0}, {KV_TILE}, v{ak0}")
    a(f"  v_add_u32 v{ak1}, {KV_TILE}, v{ak1}")
    a(f"  v_add_u32 v{av}, {KV_TILE}, v{av}")
    a(f"  s_sub_u32 s{sT}, s{sT}, 1")
    a(f"  s_cmp_lg_u32 s{sT}, 0")
    a(f"  s_cbranch_scc1 L_slow2_{name}")
    a(f"  s_nop 15")

def check_tile(a, name, O):
    t = 9
    a(f"  v_max3_f32 v{t}, abs(v{O+0}), abs(v{O+1}), abs(v{O+2})")
    for i in (3, 5, 7):
        a(f"  v_max3_f32 v{t}, abs(v{O+i}), abs(v{O+i+1}), v{t}")
    a(f"  v_max_f32 v{t}, abs(v{O+9}), v{t}")
    a(f"  v_cmp_le_f32 s[30:31], s26, v{O+10}")
    a(f"  v_cmp_ge_f32 s[32:33], s27, v{O+10}")
    a(f"  v_cmp_ge_f32 s[34:35], s28, v{t}")
    a(f"  s_nop 1")
    a(f"  s_and_b64 s[30:31], s[30:31], s[32:33]")
    a(f"  s_and_b64 s[30:31], s[30:31], s[34:35]")
    a(f"  s_cmp_eq_u64 s[30:31], -1")

def finish_tile(a, O, toff):
    t = 9
    a(f"  v_rcp_f32 v{t}, v{O+10}")
    a(f"  s_nop 0")
    for i in range(10): a(f"  v_mul_f32 v{O+i}, v{O+i}, v{t}")
    for i in range(5): a(f"  v_cvt_pk_bf16_f32 v{O+i}, v{O+2*i}, v{O+2*i+1}")
    a(f"  buffer_store_dwordx4 {vr(O,4)}, v2, s[{SRD_O}:{SRD_O+3}], s25 offen offset:{toff}")
    a(f"  buffer_store_dword v{O+4}, v14, s[{SRD_O}:{SRD_O+3}], s25 offen offset:{toff}")

def gen_k2(a, name):
    kernel_header(a, name)
    a(f"""  s_cmp_ge_u32 s2, 256
  s_cbranch_scc1 L_k2_done
  s_load_dwordx2 s[4:5], s[0:1], 80
  v_lshrrev_b32 v9, 6, v0
  v_and_b32 v1, 63, v0
  v_readfirstlane_b32 s{sW}, v9
  s_and_b32 s26, s2, 7
  s_lshr_b32 s27, s2, 3
  s_lshr_b32 s28, s27, 4          ; prob
  s_and_b32 s27, s27, 15          ; jj
  s_lshl_b32 s26, s26, 2
  s_lshr_b32 s29, s27, 2
  s_add_u32 s26, s26, s29         ; head
  s_and_b32 s27, s27, 3           ; qb
  s_cmp_eq_u32 s28, 0
  s_cselect_b32 s29, 32, s26
  s_mul_i32 s29, s29, {KV_IMG}
  s_lshl_b32 s28, s28, 5
  s_add_u32 s28, s28, s26         ; prob*32+head
  s_mul_i32 s28, s28, {Q_IMG}
  s_lshl_b32 s27, s27, 4
  s_lshl_b32 s30, s{sW}, 1
  s_add_u32 s27, s27, s30
  s_mul_i32 s25, s27, {Q_TILE}
  v_lshlrev_b32 v2, 4, v1         ; lane*16
  v_and_b32 v9, 31, v1
  v_lshlrev_b32 v3, 3, v9
  v_add_u32 v3, 1024, v3          ; 1024 + (lane&31)*8
  s_lshl_b32 s{sM0}, s{sW}, 10
  v_add_u32 v4, s{sM0}, v2
  s_waitcnt lgkmcnt(0)
  s_add_u32 s{SRD_KV}, s4, s29
  s_addc_u32 s{SRD_KV+1}, s5, 0
  s_and_b32 s{SRD_KV+1}, s{SRD_KV+1}, 0xffff
  s_mov_b32 s{SRD_KV+2}, {KV_IMG}
  s_mov_b32 s{SRD_KV+3}, 0x20000
  s_add_u32 s28, s28, {WS_Q}
  s_add_u32 s{SRD_Q}, s4, s28
  s_addc_u32 s{SRD_Q+1}, s5, 0
  s_and_b32 s{SRD_Q+1}, s{SRD_Q+1}, 0xffff
  s_mov_b32 s{SRD_Q+2}, {Q_IMG}
  s_mov_b32 s{SRD_Q+3}, 0x20000
  s_add_u32 s28, s28, {WS_O-WS_Q}
  s_add_u32 s{SRD_O}, s4, s28
  s_addc_u32 s{SRD_O+1}, s5, 0
  s_and_b32 s{SRD_O+1}, s{SRD_O+1}, 0xffff
  s_mov_b32 s{SRD_O+2}, {Q_IMG}
  s_mov_b32 s{SRD_O+3}, 0x20000
  s_mov_b32 s{sJ}, 0""")
    for j in range(5):
        a(f"  s_mov_b32 m0, s{sM0}")
        a(f"  s_add_u32 s{sM0}, s{sM0}, 8192")
        a(f"  buffer_load_dwordx4 v4, s[{SRD_KV}:{SRD_KV+3}], s{sJ} offen lds")
        a(f"  s_add_u32 s{sJ}, s{sJ}, 8192")
    a(f"""  ; Q fragments
  buffer_load_dwordx4 {vr(QA0,4)}, v2, s[{SRD_Q}:{SRD_Q+3}], s25 offen
  buffer_load_dwordx4 {vr(QB0,4)}, v2, s[{SRD_Q}:{SRD_Q+3}], s25 offen offset:{Q_TILE}
  v_mov_b32 v{QA1}, 0
  v_mov_b32 v{QA1+1}, 0
  v_mov_b32 v{QB1}, 0
  v_mov_b32 v{QB1+1}, 0
  s_mov_b32 exec_hi, 0
  buffer_load_dwordx2 {vr(QA1,2)}, v3, s[{SRD_Q}:{SRD_Q+3}], s25 offen
  buffer_load_dwordx2 {vr(QB1,2)}, v3, s[{SRD_Q}:{SRD_Q+3}], s25 offen offset:{Q_TILE}
  s_mov_b32 exec_hi, -1
  v_mov_b32 v{vK0a}, v2
  v_mov_b32 v{vK1a}, v3
  v_and_b32 v9, 31, v1            ; row
  v_mov_b32 v10, 0
  v_cmp_le_u32 vcc, 4, v9
  s_nop 1
  v_cndmask_b32 v10, v10, 6, vcc
  v_cmp_le_u32 vcc, 12, v9
  s_nop 1
  v_cndmask_b32 v10, v10, -8, vcc
  v_cmp_le_u32 vcc, 16, v9
  s_nop 1
  v_cndmask_b32 v10, v10, 2, vcc
  v_cmp_le_u32 vcc, 20, v9
  s_nop 1
  v_cndmask_b32 v10, v10, -12, vcc
  v_add_u32 v10, v10, v9
  v_lshlrev_b32 v10, 4, v10
  v_lshrrev_b32 v11, 5, v1        ; h
  v_mul_u32_u24 v11, 320, v11
  v_add_u32 v{vVa}, v10, v11
  v_add_u32 v{vVa}, 1280, v{vVa}
  v_mov_b32 v{vIdx}, 0xdddd
  s_mov_b32 s{sVM}, 0x0033ffff
  s_mov_b32 s{sVM+1}, 0x0033ffff
  v_mov_b32 v10, 0
  v_mov_b32 v12, 0x3f803f80
  v_cmp_eq_u32 vcc, 18, v9
  s_nop 1
  v_cndmask_b32 v10, v10, v12, vcc
  v_cmp_eq_u32 vcc, 22, v9
  s_nop 1
  v_cndmask_b32 v10, v10, v12, vcc""")
    for r in range(40, 56): a(f"  v_mov_b32 v{r}, v10")
    for r in range(OA, OA+32): a(f"  v_mov_b32 v{r}, 0")
    for r in range(SB[1]+8, SB[1]+16): a(f"  v_mov_b32 v{r}, 0")
    a(f"""  ; O1 store offset: 1024 + (lane&31)*8 + h*4
  v_lshrrev_b32 v11, 5, v1
  v_lshl_add_u32 v14, v11, 2, v3
  s_waitcnt vmcnt(0)
  s_barrier
  ds_read_b128 {vr(K0[0],4)}, v{vK0a}
  ds_read_b64 {vr(K1[0],2)}, v{vK1a}
  ds_read_b128 {vr(K0[1],4)}, v{vK0a} offset:{KV_TILE}
  ds_read_b64 {vr(K1[1],2)}, v{vK1a} offset:{KV_TILE}
  s_mov_b64 exec, s[{sVM}:{sVM+1}]
  ds_read_b128 {vr(V0[0],4)}, v{vVa}
  ds_read_b128 {vr(V1[0],4)}, v{vVa} offset:640
  s_mov_b64 exec, -1
  s_waitcnt lgkmcnt(0)""")
    qk16(a, SA[0], K0[0], QA0)
    qk16(a, SB[0], K0[0], QB0)
    qk8(a, SA[0], K1[0], QA1)
    qk8(a, SB[0], K1[0], QB1)
    a(f"  s_mov_b32 s{sIt}, 0")
    a(f"  s_nop 7")
    a(f".p2align 6")
    a.label("L_k2_loop")
    a(f"""  s_and_b32 s{sT}, s{sIt}, 3
  s_cmp_lg_u32 s{sT}, 3
  s_cbranch_scc1 L_k2_nobar
  s_waitcnt vmcnt(0)
  s_barrier""")
    a.label("L_k2_nobar")
    a(f"""  s_cmp_ge_u32 s{sIt}, 8
  s_cbranch_scc1 L_k2_nodma
  s_mov_b32 m0, s{sM0}
  s_add_u32 s{sM0}, s{sM0}, 8192
  buffer_load_dwordx4 v4, s[{SRD_KV}:{SRD_KV+3}], s{sJ} offen lds
  s_add_u32 s{sJ}, s{sJ}, 8192
  s_cmp_ge_u32 s{sIt}, 7
  s_cbranch_scc1 L_k2_nodma
  s_mov_b32 m0, s{sM0}
  s_add_u32 s{sM0}, s{sM0}, 8192
  buffer_load_dwordx4 v4, s[{SRD_KV}:{SRD_KV+3}], s{sJ} offen lds
  s_add_u32 s{sJ}, s{sJ}, 8192""")
    a.label("L_k2_nodma")
    for u in range(4): step(a, u)
    a(f"""  v_add_u32 v{vK0a}, {4*KV_TILE}, v{vK0a}
  v_add_u32 v{vK1a}, {4*KV_TILE}, v{vK1a}
  v_add_u32 v{vVa}, {4*KV_TILE}, v{vVa}
  s_add_u32 s{sIt}, s{sIt}, 1
  s_cmp_lt_u32 s{sIt}, 16
  s_cbranch_scc1 L_k2_loop""")
    a("  s_nop 1")
    pv(a, OB, V1[1], SB[1]+8)
    a(f"""  s_mov_b32 s26, 0x1f800000      ; 2^-64
  s_mov_b32 s27, 0x5f800000      ; 2^64
  s_mov_b32 s28, 0x7e800000      ; 2^126
  s_nop 15""")
    check_tile(a, "a", OA)
    a("  s_cbranch_scc1 L_k2_oka")
    slow_tile(a, "a", QA0, QA1, OA)
    a.label("L_k2_oka")
    finish_tile(a, OA, 0)
    check_tile(a, "b", OB)
    a("  s_cbranch_scc1 L_k2_okb")
    slow_tile(a, "b", QB0, QB1, OB)
    a.label("L_k2_okb")
    finish_tile(a, OB, Q_TILE)
    a.label("L_k2_done")
    a("  s_endpgm")
    return NV
```

```python
from common import *

ACC = 16
def acc(ft, tt): return ACC + (ft*2 + tt)*4
OF = 56
def of(ks, tt): return OF + (ks*2 + tt)*4
FW = [216, 236]
NV = 256
SRD_W, SRD_O, SRD_OUT = 8, 12, 16
sWv = 20

def wreads(ks, buf):
    r = []
    base = 4 if ks < 10 else 5
    kk = ks if ks < 10 else ks - 10
    for ft in range(5):
        for t in range(2):
            r.append(f"  ds_read_b64_tr_b16 {vr(FW[buf]+4*ft+2*t,2)}, v{base} offset:{kk*5120 + t*1280 + 8*ft}")
    return r

def mf(ks, buf):
    m = []
    for ft in range(5):
        for tt in range(2):
            d = vr(acc(ft, tt), 4)
            m.append(f"  v_mfma_f32_16x16x32_bf16 {d}, {vr(FW[buf]+4*ft,4)}, {vr(of(ks,tt),4)}, {d}")
    return m

def issue_chunk(c):
    L = []
    for p in range(5):
        L.append(f"  s_add_u32 m0, s26, {c*4*5120 + p*1024}")
        vo = (6+p) if c < 4 else (11+p)
        so = "s27" if c < 4 else "s28"
        L.append(f"  s_nop 0")
        L.append(f"  buffer_load_dwordx4 v{vo}, s[{SRD_W}:{SRD_W+3}], {so} offen lds")
    if c < 4:
        L.append(f"  s_add_u32 s27, s27, {4*51200}")
    for k in range(4):
        ks = 4*c + k
        if c < 4:
            for tt in range(2):
                L.append(f"  buffer_load_dwordx4 {vr(of(ks,tt),4)}, v2, s[{SRD_O}:{SRD_O+3}], s29 offen offset:{tt*256}")
            L.append(f"  s_add_u32 s29, s29, {2*Q_IMG}")
        else:
            for tt in range(2):
                L.append(f"  buffer_load_dwordx2 {vr(of(ks,tt),2)}, v3, s[{SRD_O}:{SRD_O+3}], s30 offen offset:{tt*128}")
                L.append(f"  buffer_load_dwordx2 {vr(of(ks,tt)+2,2)}, v3, s[{SRD_O}:{SRD_O+3}], s31 offen offset:{tt*128}")
            L.append(f"  s_add_u32 s30, s30, {8*Q_IMG}")
            L.append(f"  s_add_u32 s31, s31, {8*Q_IMG}")
    return L

def nvm(c): return 5 + (8 if c < 4 else 16)

def gen_k3(a, name):
    kernel_header(a, name)
    a(f"""  s_cmp_ge_u32 s2, 256
  s_cbranch_scc1 L_k3_done
  s_load_dwordx2 s[36:37], s[0:1], 32     ; A_wo
  s_load_dwordx2 s[38:39], s[0:1], 56     ; B_wo
  s_load_dwordx2 s[40:41], s[0:1], 64     ; out
  s_load_dwordx2 s[42:43], s[0:1], 80     ; ws
  v_lshrrev_b32 v2, 6, v0
  v_and_b32 v1, 63, v0
  v_readfirstlane_b32 s{sWv}, v2
  s_and_b32 s21, s2, 7            ; xcd
  s_lshr_b32 s22, s2, 3           ; j
  s_lshr_b32 s23, s22, 4          ; prob
  s_and_b32 s22, s22, 15          ; jj
  s_lshr_b32 s24, s21, 1
  s_lshl_b32 s24, s24, 2
  s_and_b32 s25, s22, 3
  s_add_u32 s24, s24, s25         ; mb
  s_and_b32 s21, s21, 1
  s_lshl_b32 s21, s21, 2
  s_lshr_b32 s22, s22, 2
  s_add_u32 s25, s21, s22         ; nb
  ; ---- DMA source offsets: chunk q = 64 p + lane, rho = q/10, c = q%10
  s_movk_i32 s21, 6554
  s_movk_i32 s22, 1280""")
    for p in range(5):
        a(f"""  v_add_u32 v16, {64*p}, v1
  v_mul_lo_u32 v17, v16, s21
  v_lshrrev_b32 v17, 16, v17      ; rho (0..31)
  v_mul_u32_u24 v18, 10, v17
  v_sub_u32 v18, v16, v18         ; c
  v_lshlrev_b32 v18, 4, v18
  v_lshrrev_b32 v19, 4, v17       ; a
  v_bfe_u32 v20, v17, 3, 1        ; t
  v_bfe_u32 v21, v17, 2, 1        ; b
  v_and_b32 v22, 3, v17           ; r
  v_mul_u32_u24 v23, 20, v19
  v_lshl_add_u32 v23, v21, 3, v23
  v_lshl_add_u32 v23, v20, 2, v23
  v_add_u32 v23, v23, v22
  v_mul_lo_u32 v23, v23, s22
  v_add_u32 v{6+p}, v23, v18
  v_lshl_add_u32 v23, v19, 1, v21
  v_lshl_add_u32 v23, v23, 1, v20
  v_mul_u32_u24 v23, 20, v23
  v_add3_u32 v23, v23, v22, 16
  v_mul_lo_u32 v23, v23, s22
  v_add_u32 v{11+p}, v23, v18""")
    a(f"""  ; O fragment offsets
  v_and_b32 v16, 15, v1           ; i
  v_lshrrev_b32 v17, 4, v1        ; kg
  v_lshrrev_b32 v18, 1, v17
  s_mov_b32 s21, {Q_IMG}
  v_mul_lo_u32 v18, v18, s21
  v_and_b32 v19, 1, v17
  v_lshlrev_b32 v19, 9, v19
  v_lshlrev_b32 v20, 4, v16
  v_add3_u32 v2, v18, v19, v20
  v_lshlrev_b32 v18, 1, v17
  v_mul_lo_u32 v18, v18, s21
  v_lshlrev_b32 v20, 3, v16
  v_add3_u32 v3, v18, v20, 0
  v_add_u32 v3, 1024, v3
  v_lshrrev_b32 v18, 1, v17
  v_lshlrev_b32 v18, 4, v18
  v_and_b32 v19, 1, v17
  v_lshl_add_u32 v18, v19, 2, v18
  v_lshrrev_b32 v19, 2, v16
  v_add_u32 v18, v18, v19
  v_mul_u32_u24 v18, 160, v18
  v_and_b32 v19, 3, v16
  v_mul_u32_u24 v19, 40, v19
  v_add_u32 v4, v18, v19
  v_add_u32 v5, {10*5120}, v4""")
    for r in range(ACC, ACC+40): a(f"  v_mov_b32 v{r}, 0")
    a(f"""  s_waitcnt lgkmcnt(0)
  s_cmp_eq_u32 s23, 0
  s_cselect_b32 s21, s36, s38
  s_cselect_b32 s22, s37, s39
  s_mul_i32 s26, s25, 160
  s_add_u32 s{SRD_W}, s21, s26
  s_addc_u32 s{SRD_W+1}, s22, 0
  s_and_b32 s{SRD_W+1}, s{SRD_W+1}, 0xffff
  s_sub_u32 s{SRD_W+2}, {640*1280}, s26
  s_mov_b32 s{SRD_W+3}, 0x20000
  s_mul_i32 s21, s23, {32*Q_IMG}
  s_add_u32 s21, s21, {WS_O}
  s_add_u32 s{SRD_O}, s42, s21
  s_addc_u32 s{SRD_O+1}, s43, 0
  s_and_b32 s{SRD_O+1}, s{SRD_O+1}, 0xffff
  s_mov_b32 s{SRD_O+2}, {32*Q_IMG}
  s_mov_b32 s{SRD_O+3}, 0x20000
  s_lshl_b32 s21, s24, 7
  s_lshl_b32 s22, s{sWv}, 5
  s_add_u32 s21, s21, s22         ; token0
  s_mul_i32 s21, s21, 2560
  s_mul_i32 s22, s23, 1280
  s_add_u32 s21, s21, s22
  s_mul_i32 s22, s25, 160
  s_add_u32 s21, s21, s22
  s_add_u32 s{SRD_OUT}, s40, s21
  s_addc_u32 s{SRD_OUT+1}, s41, 0
  s_and_b32 s{SRD_OUT+1}, s{SRD_OUT+1}, 0xffff
  s_sub_u32 s{SRD_OUT+2}, {2048*2560}, s21
  s_mov_b32 s{SRD_OUT+3}, 0x20000
  s_mul_i32 s26, s{sWv}, 5120
  s_mul_i32 s27, s{sWv}, 51200
  s_mul_i32 s28, s{sWv}, {160*1280}
  s_lshl_b32 s21, s24, 2
  s_add_u32 s21, s21, s{sWv}      ; q tile
  s_mul_i32 s29, s21, {Q_TILE}
  s_mov_b32 s30, s29
  s_add_u32 s31, s29, {Q_IMG}""")
    for x in issue_chunk(0): a(x)
    for x in issue_chunk(1): a(x)
    pend = 0
    for c in range(5):
        nxt = nvm(c+1) if c+1 < 5 else 0
        a(f"  s_waitcnt vmcnt({nxt})")
        a(f"  s_barrier")
        extra = issue_chunk(c+2) if c+2 < 5 else []
        for r in wreads(4*c, 0): a(r)
        for k in range(4):
            ks = 4*c + k; buf = k & 1
            a(f"  s_waitcnt lgkmcnt(0)")
            ms = mf(ks, buf)
            rs = wreads(ks+1, buf ^ 1) if k < 3 else []
            n = (len(extra) + 3 - k)//(4-k) if extra else 0
            ex, extra = extra[:n], extra[n:]
            while extra and (ex and (ex[-1].startswith("  s_add_u32 m0") or ex[-1].startswith("  s_nop"))):
                ex.append(extra.pop(0))
            for i, m in enumerate(ms):
                a(m)
                if i < len(rs): a(rs[i])
                lo = (i*len(ex))//10; hi = ((i+1)*len(ex))//10
                for x in ex[lo:hi]: a(x)
    a(f"  s_nop 7")
    a(f"""  v_and_b32 v6, 15, v1
  v_lshrrev_b32 v7, 4, v1
  s_movk_i32 s21, 2560
  v_mul_lo_u32 v6, v6, s21
  v_mul_u32_u24 v7, 40, v7
  v_add_u32 v2, v6, v7
  v_add_u32 v3, {16*2560}, v2""")
    for tt in range(2):
        R = 216 + 12*tt
        for ft in range(5):
            A = acc(ft, tt)
            a(f"  v_cvt_pk_bf16_f32 v{R+2*ft}, v{A}, v{A+1}")
            a(f"  v_cvt_pk_bf16_f32 v{R+2*ft+1}, v{A+2}, v{A+3}")
        S = f"s[{SRD_OUT}:{SRD_OUT+3}]"
        a(f"  buffer_store_dwordx4 {vr(R,4)}, v{2+tt}, {S}, 0 offen")
        a(f"  buffer_store_dwordx4 {vr(R+4,4)}, v{2+tt}, {S}, 0 offen offset:16")
        a(f"  buffer_store_dwordx2 {vr(R+8,2)}, v{2+tt}, {S}, 0 offen offset:32")
    a.label("L_k3_done")
    a("  s_endpgm")
    return NV
```

```python
import sys
from common import *
import k1, k2, k3
NAME = "concat_heads__grouped_kv_mqa__mha_block__prompt"
def build(path):
    a = Asm()
    ref = open("cdna_kernels/%s.s.ref" % NAME).read().split("\n")
    for ln in ref:
        if ln.startswith("; Override") : break
        a(ln)
    a("; @launch kernel=proj_kernel grid=(256,1,1) block=(512,1,1) lds=%d" % (3*k1.STG))
    a("; @launch kernel=attn_kernel grid=(256,1,1) block=(512,1,1) lds=163840")
    a("; @launch kernel=outp_kernel grid=(256,1,1) block=(256,1,1) lds=102400")
    a('.amdgcn_target "amdgcn-amd-amdhsa--gfx950"')
    a(".text")
    n1 = k1.gen_k1(a, "proj_kernel")
    n2 = k2.gen_k2(a, "attn_kernel")
    n3 = k3.gen_k3(a, "outp_kernel")
    a('.section .rodata,"a"')
    a(descriptor("proj_kernel", n1))
    a(descriptor("attn_kernel", n2))
    a(descriptor("outp_kernel", n3))
    open(path, "w").write(a.text())
if __name__ == "__main__":
    build(sys.argv[1] if len(sys.argv) > 1 else "cdna_kernels/%s.s" % NAME)
```

```python
import sys, subprocess
HEAD = """.amdgcn_target "amdgcn-amd-amdhsa--gfx950"
.text
"""
def kernel(name, body, niter, nwaves_per_wg, nvgpr=256, init="", accum=None, pre=""):
    s = f"""
.globl {name}
.p2align 8
.type {name},@function
{name}:
  s_load_dwordx4 s[4:7], s[0:1], 0
  v_lshrrev_b32 v1, 6, v0
  s_nop 0
  v_readfirstlane_b32 s30, v1
  s_waitcnt lgkmcnt(0)
  s_mov_b32 s8, s4
  s_mov_b32 s9, s5
  s_mov_b32 s10, 0x4000000
  s_mov_b32 s11, 0x20000
  s_mov_b32 s12, s6
  s_mov_b32 s13, s7
  s_mov_b32 s14, 0x4000000
  s_mov_b32 s15, 0x20000
  s_mul_i32 s31, s2, {nwaves_per_wg}
  s_add_u32 s31, s31, s30
  v_and_b32 v2, 63, v0
  v_lshlrev_b32 v2, 4, v2
"""
    for r in range(4, nvgpr-3, 4):
        s += f"  buffer_load_dwordx4 v[{r}:{r+3}], v2, s[8:11], 0 offen offset:{(r*64)%4096}\n"
        if (r//4) % 16 == 15:
            s += "  s_waitcnt vmcnt(0)\n"
    s += "  s_waitcnt vmcnt(0)\n"
    s += init
    s += f"""
  s_barrier
  s_memtime s[20:21]
  s_memrealtime s[22:23]
  s_mov_b32 s16, {niter}
  s_waitcnt lgkmcnt(0)
{pre}
.p2align 6
L_{name}:
{body}
  s_sub_u32 s16, s16, 1
  s_cmp_lg_u32 s16, 0
  s_cbranch_scc1 L_{name}
  s_nop 15
  s_memtime s[24:25]
  s_memrealtime s[26:27]
  s_waitcnt lgkmcnt(0)
  s_sub_u32 s24, s24, s20
  s_sub_u32 s26, s26, s22
  v_mov_b32 v4, s24
  v_mov_b32 v5, s26
  s_lshl_b32 s31, s31, 3
  v_mov_b32 v2, s31
  v_cmp_eq_u32 vcc, 0, v0
  v_and_b32 v3, 63, v0
  v_cmp_eq_u32 vcc, 0, v3
  s_nop 4
  s_and_saveexec_b64 s[28:29], vcc
  buffer_store_dwordx2 v[4:5], v2, s[12:15], 0 offen
  s_waitcnt vmcnt(0)
  s_endpgm
"""
    acc = accum if accum else ((nvgpr+3)//4*4 if nvgpr<=256 else 256)
    desc = f"""
.amdhsa_kernel {name}
  .amdhsa_next_free_vgpr {nvgpr}
  .amdhsa_next_free_sgpr 96
  .amdhsa_accum_offset {acc}
  .amdhsa_group_segment_fixed_size 0
  .amdhsa_kernarg_size 16
  .amdhsa_user_sgpr_count 2
  .amdhsa_user_sgpr_kernarg_segment_ptr 1
  .amdhsa_system_sgpr_workgroup_id_x 1
.end_amdhsa_kernel
"""
    meta = f"""  - .name: {name}
    .symbol: {name}.kd
    .kernarg_segment_size: 16
    .kernarg_segment_align: 8
    .group_segment_fixed_size: 0
    .private_segment_fixed_size: 0
    .wavefront_size: 64
    .sgpr_count: 96
    .vgpr_count: {nvgpr}
    .max_flat_workgroup_size: 1024
    .args:
      - {{.name: a_in, .size: 8, .offset: 0, .value_kind: global_buffer, .address_space: global}}
      - {{.name: a_out, .size: 8, .offset: 8, .value_kind: global_buffer, .address_space: global}}
"""
    return s, desc, meta

def build(fname, kernels):
    txt = HEAD
    for k in kernels: txt += k[0]
    txt += '\n.section .rodata,"a"\n'
    for k in kernels: txt += ".p2align 6\n" + k[1]
    txt += "\n.amdgpu_metadata\n---\namdhsa.version: [1, 2]\namdhsa.kernels:\n"
    for k in kernels: txt += k[2]
    txt += "...\n.end_amdgpu_metadata\n"
    open(fname + ".s", "w").write(txt)
    r = subprocess.run(["clang", "-x", "assembler", "-target", "amdgcn-amd-amdhsa", "-mcpu=gfx950", fname + ".s", "-o", fname + ".co"], capture_output=True, text=True)
    if r.returncode != 0:
        print(r.stderr[:3000]); sys.exit(1)
    print("built", fname)
```

```python
from gen import build
def k(name, dma, direct=False):
    mf=""
    for i in range(10):
        mf+=f"  v_mfma_f32_16x16x32_bf16 v[{64+4*i}:{67+4*i}], v[20:23], v[24:27], v[{64+4*i}:{67+4*i}]\n"
        mf+=f"  ds_read_b64_tr_b16 v[{28+2*(i%5)}:{29+2*(i%5)}], v3 offset:{512*i}\n"
    mf+="  s_waitcnt lgkmcnt(0)\n"
    ld = "buffer_load_dwordx4 v2, s[8:11], s20 offen lds" if not direct else "buffer_load_dwordx4 v[40:43], v2, s[8:11], s20 offen"
    s=f"""
.globl {name}
.p2align 8
.type {name},@function
{name}:
  s_load_dwordx4 s[4:7], s[0:1], 0
  v_lshrrev_b32 v1, 6, v0
  v_and_b32 v4, 63, v0
  v_readfirstlane_b32 s30, v1
  v_lshlrev_b32 v2, 4, v4
  v_lshlrev_b32 v3, 3, v4
  s_waitcnt lgkmcnt(0)
  s_mov_b32 s8, s4
  s_mov_b32 s9, s5
  s_mov_b32 s10, 0x100000
  s_mov_b32 s11, 0x20000
  s_mov_b32 s12, s6
  s_mov_b32 s13, s7
  s_mov_b32 s14, 0x4000000
  s_mov_b32 s15, 0x20000
  s_mul_i32 s31, s2, 8
  s_add_u32 s31, s31, s30
  s_lshl_b32 s20, s30, 10
  s_lshl_b32 s24, s30, 10
  s_add_u32 s24, s24, 32768
  s_mov_b32 m0, s24
  s_barrier
  s_memtime s[40:41]
  s_waitcnt lgkmcnt(0)
  s_cmp_ge_u32 s30, 4
  s_cbranch_scc1 L2_{name}
  s_mov_b32 s16, 400
L1_{name}:
{mf}
  s_sub_u32 s16, s16, 1
  s_cmp_lg_u32 s16, 0
  s_cbranch_scc1 L1_{name}
  s_branch L3_{name}
L2_{name}:
  s_mov_b32 s16, {800 if dma else 1}
L4_{name}:
  s_and_b32 s20, s20, 0xfffff
  {ld if dma else "s_nop 0"}
  s_add_u32 s20, s20, 8192
  s_waitcnt vmcnt(8)
  s_sub_u32 s16, s16, 1
  s_cmp_lg_u32 s16, 0
  s_cbranch_scc1 L4_{name}
  s_waitcnt vmcnt(0)
L3_{name}:
  s_memtime s[42:43]
  s_waitcnt lgkmcnt(0)
  s_sub_u32 s42, s42, s40
  v_mov_b32 v4, s42
  v_mov_b32 v5, 0
  s_lshl_b32 s31, s31, 3
  v_mov_b32 v2, s31
  v_and_b32 v3, 63, v0
  v_cmp_eq_u32 vcc, 0, v3
  s_nop 4
  s_and_saveexec_b64 s[28:29], vcc
  buffer_store_dwordx2 v[4:5], v2, s[12:15], 0 offen
  s_waitcnt vmcnt(0)
  s_endpgm
"""
    d=f"""
.amdhsa_kernel {name}
  .amdhsa_next_free_vgpr 128
  .amdhsa_next_free_sgpr 96
  .amdhsa_accum_offset 128
  .amdhsa_group_segment_fixed_size 0
  .amdhsa_kernarg_size 16
  .amdhsa_user_sgpr_count 2
  .amdhsa_user_sgpr_kernarg_segment_ptr 1
  .amdhsa_system_sgpr_workgroup_id_x 1
.end_amdhsa_kernel
"""
    m=f"""  - .name: {name}
    .symbol: {name}.kd
    .kernarg_segment_size: 16
    .kernarg_segment_align: 8
    .group_segment_fixed_size: 0
    .private_segment_fixed_size: 0
    .wavefront_size: 64
    .sgpr_count: 96
    .vgpr_count: 128
    .max_flat_workgroup_size: 1024
    .args:
      - {{.name: a_in, .size: 8, .offset: 0, .value_kind: global_buffer, .address_space: global}}
      - {{.name: a_out, .size: 8, .offset: 8, .value_kind: global_buffer, .address_space: global}}
"""
    return s,d,m
build("mb9",[k("nodma",False),k("dma",True),k("direct",True,True)])
```
